```python
import torch

def _softmax(x, axis=-1):
    return torch.softmax(x, dim=axis)
def _gelu(x):
    return torch.nn.functional.gelu(x, approximate="tanh")
def _silu(x):
    return torch.nn.functional.silu(x)
def _sigmoid(x):
    return torch.sigmoid(x)
def _layernorm(x, axis=-1, eps=1e-5):
    m = x.mean(dim=axis, keepdim=True)
    v = x.var(dim=axis, keepdim=True, unbiased=False)
    return (x - m) / torch.sqrt(v + eps)
def _scatter_add(tgt, idx, src, axis=0):
    return tgt.clone().index_add_(axis, idx, src)
def _segment_sum(src, seg, n):
    out = torch.zeros((n,) + src.shape[1:], dtype=src.dtype)
    return out.index_add_(0, seg, src)
def _pad(x, pw):
    flat = tuple(v for pair in reversed(pw) for v in pair)
    return torch.nn.functional.pad(x, flat)

kernel_name = 'parallel_sum__ssm_conv_s4d__mixer_token_mlp__prompt'

def setup_inputs():

    _w = (lambda a: (lambda t: t.to(torch.bfloat16) if t.is_floating_point() else t)(torch.as_tensor(a)))
    def _A_setup():
        Bsz, L, D, N = 1, 2048, 640, 192
        return {
            "u": _w((lambda *s: torch.randn(*s, dtype=torch.bfloat16) * 0.05)(Bsz, L, D)),
            "log_A_real": _w((lambda *s: torch.randn(*s, dtype=torch.bfloat16) * 3.2)(D, N) * 0.5),
            "A_imag": _w((lambda *s: torch.randn(*s, dtype=torch.bfloat16) * 0.05)(D, N) * 3.14),
            "C_real": _w((lambda *s: torch.randn(*s, dtype=torch.bfloat16) * 0.1)(D, N) / N ** 0.5),
            "C_imag": _w((lambda *s: torch.randn(*s, dtype=torch.bfloat16) * 0.1)(D, N) / N ** 0.5),
            "log_dt": _w((lambda *s: torch.randn(*s, dtype=torch.bfloat16) * 0.05)(D) * 0.5 - 4.0),
            "D_skip": _w((lambda *s: torch.randn(*s, dtype=torch.bfloat16) * 0.05)(D)),
        }
    _A_in = _A_setup()

    def _B_setup():
        B, S, D, F = 1, 2048, 640, 1536
        return {
            "x": _w((lambda *s: torch.randn(*s, dtype=torch.bfloat16) * 0.05)(B, S, D)),
            "w1": _w((lambda *s: torch.randn(*s, dtype=torch.bfloat16) * 0.8)(S, F) * (S ** -0.5)),
            "b1": _w((lambda *s: torch.randn(*s, dtype=torch.bfloat16) * 3.2)(F) * 0.02),
            "w2": _w((lambda *s: torch.randn(*s, dtype=torch.bfloat16) * 0.4)(F, S) * (F ** -0.5)),
            "b2": _w((lambda *s: torch.randn(*s, dtype=torch.bfloat16) * 1.6)(S) * 0.02),
        }
    _B_in = _B_setup()

    return {
        "A_u": _A_in["u"],
        "A_log_A_real": _A_in["log_A_real"],
        "A_A_imag": _A_in["A_imag"],
        "A_C_real": _A_in["C_real"],
        "A_C_imag": _A_in["C_imag"],
        "A_log_dt": _A_in["log_dt"],
        "A_D_skip": _A_in["D_skip"],
        "B_x": _B_in["x"],
        "B_w1": _B_in["w1"],
        "B_b1": _B_in["b1"],
        "B_w2": _B_in["w2"],
        "B_b2": _B_in["b2"],
    }

def reference(A_u, A_log_A_real, A_A_imag, A_C_real, A_C_imag, A_log_dt, A_D_skip, B_x, B_w1, B_b1, B_w2, B_b2):
    def _A_ref(u, log_A_real, A_imag, C_real, C_imag, log_dt, D_skip):
        L = u.shape[1]
        dt = torch.exp(log_dt)
        A = -torch.exp(log_A_real) + 1j * A_imag
        C = (C_real + 1j * C_imag) * dt[:, None]
        pos = (lambda x, dt: x.to(dt))(torch.arange(L), log_dt.dtype)
        P = torch.exp((A * dt[:, None])[:, :, None] * pos[None, None, :])
        K = 2.0 * torch.einsum("dn,dnl->dl", C, P).real
        L2 = 2 * L
        u_t = (lambda x, *d: x.permute(*d))(u, 0, 2, 1)
        Kf = (lambda x, *a, **k: torch.fft.rfft(x.float(), *a, **k))(K, L2)
        Uf = (lambda x, *a, **k: torch.fft.rfft(x.float(), *a, **k))(u_t, L2)
        y = (lambda x, *a, **k: torch.fft.irfft(x, *a, **k).to(torch.bfloat16))(Uf * Kf[None, :, :], L2)[:, :, :L]
        y = (lambda x, *d: x.permute(*d))(y, 0, 2, 1)
        return y + u * D_skip[None, None, :]

    def _B_ref(x, w1, b1, w2, b2):
        B, S, D = x.shape
        h = _layernorm(x, axis=-1)
        u = torch.einsum("bsd,sf->bdf", h, w1) + b1
        u = _gelu(u)
        y = torch.einsum("bdf,fs->bds", u, w2) + b2
        return (lambda x, *d: x.permute(*d))(y, 0, 2, 1)

    x = A_u
    xn = _layernorm(x, axis=-1)
    return x + _A_ref(xn, A_log_A_real, A_A_imag, A_C_real, A_C_imag, A_log_dt, A_D_skip) + _B_ref(xn, B_w1, B_b1, B_w2, B_b2)
```

```python
import re

TRANS = ("v_exp_f32", "v_log_f32", "v_rcp_f32", "v_rsq_f32", "v_sqrt_f32", "v_sin_f32", "v_cos_f32", "v_rcp_iflag_f32")
REG_RE = re.compile(r'^(-?)(abs\()?([vas])(\d+|\[(\d+):(\d+)\])\)?$')

def regs_of(tok):
    tok = tok.strip()
    if tok in ("vcc",): return {("s", "vcc")}
    if tok in ("vcc_lo", "vcc_hi"): return {("s", "vcc")}
    if tok == "exec": return {("s", "exec")}
    if tok == "m0": return {("s", "m0")}
    m = REG_RE.match(tok)
    if not m: return set()
    k = m.group(3)
    if m.group(5) is not None:
        return {(k, i) for i in range(int(m.group(5)), int(m.group(6)) + 1)}
    return {(k, int(m.group(4)))}

class Ins:
    __slots__ = ("text", "op", "dst", "src", "kind", "passes", "srcC", "dpp", "label", "nopn", "ops", "ldsdma", "wide", "data")
    def __init__(self, text):
        self.text = text
        t = text.split(";")[0].strip()
        self.label = None; self.op = None; self.dst = set(); self.src = set(); self.kind = "other"
        self.passes = 0; self.srcC = set(); self.dpp = False; self.nopn = 1; self.ldsdma = False; self.wide = False; self.data = set()
        if not t: self.kind = "empty"; self.nopn = 0; return
        if t.endswith(":"): self.label = t[:-1]; self.kind = "label"; self.nopn = 0; return
        if t.startswith("."): self.kind = "dir"; self.nopn = 0; return
        parts = t.split(None, 1)
        op = parts[0]; self.op = op
        rest = parts[1] if len(parts) > 1 else ""
        ops = []; cur = ""; depth = 0
        for ch in rest:
            if ch == "[": depth += 1
            if ch == "]": depth -= 1
            if ch == "," and depth == 0: ops.append(cur.strip()); cur = ""
            else: cur += ch
        if cur.strip(): ops.append(cur.strip())
        mods = ""
        if ops:
            sp = ops[-1].split(None, 1)
            ops[-1] = sp[0]
            if len(sp) > 1: mods = sp[1]
        self.ops = ops
        R = [regs_of(o) for o in ops]
        if op == "s_nop":
            self.kind = "nop"; self.nopn = int(ops[0], 0) + 1; return
        if op.startswith("v_mfma"):
            self.kind = "mfma"
            self.passes = 8 if "32x32" in op else 4
            self.dst = R[0]; self.src = R[1] | R[2]; self.srcC = R[3] if len(R) > 3 else set()
            return
        if op.startswith("v_"):
            self.kind = "valu"
            self.dpp = ("_dpp" in op) or any(k in mods for k in ("quad_perm", "row_", "wave_"))
            if op.startswith("v_cmp"):
                self.dst = R[0]; self.src = set().union(*R[1:])
            elif op.startswith("v_permlane"):
                self.dst = R[0] | R[1]; self.src = R[0] | R[1]
            elif op in ("v_add_co_u32", "v_sub_co_u32", "v_addc_co_u32", "v_subb_co_u32"):
                self.dst = R[0] | R[1]; self.src = set().union(*R[2:])
            else:
                self.dst = R[0]; self.src = set().union(*R[1:]) if len(R) > 1 else set()
                if op.startswith(("v_fmac", "v_dot2c", "v_pk_fmac", "v_writelane")): self.src |= R[0]
            return
        if op.startswith("ds_"):
            self.kind = "ds"
            if "read" in op or "bpermute" in op or "swizzle" in op or "_rtn" in op:
                self.dst = R[0]; self.src = set().union(*R[1:]) if len(R) > 1 else set()
            else:
                self.src = set().union(*R)
            if "addtid" in op: self.src |= {("s", "m0")}; self.ldsdma = True
            return
        if op.startswith(("buffer_", "global_")):
            self.kind = "vmem"
            lds = (" lds" in (" " + mods)) or ("_lds_" in op)
            if op.startswith(("buffer_inv", "buffer_wbl2")): return
            if lds:
                self.ldsdma = True; self.src = set().union(*R) | {("s", "m0")}
            elif "load" in op:
                self.dst = R[0]; self.src = set().union(*R[1:])
            elif op.startswith("global_store") or op.startswith("global_atomic"):
                self.src = set().union(*R); self.data = R[1]
                self.wide = op.endswith(("x3", "x4"))
            else:
                self.src = set().union(*R); self.data = R[0]
                self.wide = op.endswith(("x3", "x4"))
                if "atomic" in op and "sc0" in mods: self.dst = R[0]
            return
        if op.startswith("s_"):
            self.kind = "salu"
            if op.startswith(("s_cmp", "s_cbranch", "s_branch", "s_waitcnt", "s_barrier", "s_endpgm", "s_sleep", "s_setprio", "s_setpc")):
                self.src = set().union(*R) if R else set()
            else:
                self.dst = R[0] if R else set(); self.src = set().union(*R[1:]) if len(R) > 1 else set()
                if "saveexec" in op: self.dst |= {("s", "exec")}
            return

def need(p, c):
    n = 0
    vec = lambda S: {r for r in S if r[0] in "va"}
    sca = lambda S: {r for r in S if r[0] == "s"}
    if p.kind == "valu":
        pv = vec(p.dst); ps = sca(p.dst)
        if c.kind == "mfma" and pv & (c.src | c.srcC): n = max(n, 2)
        if c.kind == "valu":
            if p.op.replace("_e32", "").replace("_e64", "") in TRANS and pv & c.src: n = max(n, 1)
            if c.dpp and pv & c.src: n = max(n, 2)
            if c.op.startswith("v_permlane") and pv & c.src: n = max(n, 2)
            if c.op.startswith(("v_readlane", "v_readfirstlane")) and pv & c.src: n = max(n, 1)
            if ps & c.src: n = max(n, 4 if c.op.startswith(("v_readlane", "v_writelane")) else 2)
        if c.kind == "vmem" and ps & c.src: n = max(n, 5)
        if c.kind == "salu" and ps & c.src: n = max(n, 1)
        if c.kind == "mfma" and ("s", "exec") in ps: n = max(n, 4)
    if p.kind == "mfma":
        big = p.passes == 8
        if c.kind == "mfma":
            if p.dst & c.src: n = max(n, 12 if big else 8)
            if p.dst & c.srcC and not (p.dst == c.srcC and p.passes == c.passes): n = max(n, 10 if big else 6)
            if p.dst & c.dst and not (p.dst == c.srcC and p.passes == c.passes): n = max(n, 12 if big else 8)
        elif c.kind in ("valu", "ds", "vmem"):
            if p.dst & (c.src | c.dst): n = max(n, 12 if big else 8)
            if c.kind == "valu" and p.srcC & c.dst: n = max(n, 7 if big else 3)
    if p.kind == "salu" and ("s", "m0") in p.dst and c.ldsdma: n = max(n, 1)
    if p.kind == "vmem" and p.wide and p.data & c.dst: n = max(n, 2 if c.kind == "valu" else 1)
    return n

class Asm:
    def __init__(self):
        self.L = []
    def __call__(self, s):
        for l in s.split("\n"):
            l = l.strip()
            if l: self.L.append(l)
    def c(self, s): self.L.append("; " + s)
    def text(self, fix=True):
        ins = [Ins(l) for l in self.L]
        if fix: ins = fix_hazards(ins)
        out = []
        for i in ins:
            out.append(i.text if (i.kind in ("label", "dir") or i.text.startswith(";")) else "    " + i.text)
        return "\n".join(out) + "\n"

def _gap_needed(window, c):
    dist = 0; extra = 0
    for p in reversed(window):
        if p.nopn == 0: continue
        n = need(p, c) if p.kind != "nop" else 0
        if n > dist: extra = max(extra, n - dist)
        dist += p.nopn
        if dist > 20: break
    return extra

def fix_hazards(ins):
    out = []
    for c in ins:
        if c.kind in ("label", "dir", "empty", "nop"):
            out.append(c); continue
        e = _gap_needed(out[-40:], c)
        if e: out.append(Ins("s_nop %d ; hz" % (e - 1)))
        out.append(c)
    changed = True; it = 0
    while changed and it < 10:
        changed = False; it += 1
        pos = {i.label: k for k, i in enumerate(out) if i.label}
        for k, b in enumerate(out):
            if b.op and (b.op.startswith("s_cbranch") or b.op == "s_branch"):
                tgt = b.ops[0]
                if tgt not in pos: continue
                win = out[max(0, k - 40):k + 1]
                j = pos[tgt] + 1; seen = list(win); cnt = 0
                while j < len(out) and cnt < 24:
                    c = out[j]
                    if c.kind not in ("label", "dir", "empty", "nop"):
                        e = _gap_needed(seen, c)
                        if e:
                            out.insert(j, Ins("s_nop %d ; hzb" % (e - 1))); changed = True; break
                        if c.op in ("s_branch", "s_endpgm"): break
                    seen.append(c); cnt += c.nopn; j += 1
                if changed: break
    return out

def kdesc(name, vgpr=512, sgpr=96, accum=256):
    return f""".p2align 6
.amdhsa_kernel {name}
  .amdhsa_next_free_vgpr {vgpr}
  .amdhsa_next_free_sgpr {sgpr}
  .amdhsa_accum_offset {accum}
  .amdhsa_group_segment_fixed_size 0
  .amdhsa_kernarg_size 120
  .amdhsa_user_sgpr_count 2
  .amdhsa_user_sgpr_kernarg_segment_ptr 1
  .amdhsa_system_sgpr_workgroup_id_x 1
  .amdhsa_float_denorm_mode_32 3
.end_amdhsa_kernel
"""
```

```python
from asmlib import *
import struct, math
S, D, F, N = 2048, 640, 1536, 192
WS_HT, WS_XT, WS_G, WS_CV = 0, 0x280000, 0x500000, 0x700000
SZ_SD = S * D * 2
SZ_G = D * F * 2
NAME = "parallel_sum__ssm_conv_s4d__mixer_token_mlp__prompt"
def f2u(x): return struct.unpack("<I", struct.pack("<f", x))[0]
def hexf(x): return "0x%08x" % f2u(x)
LOG2E = 1.4426950408889634
LOG2E_HI = struct.unpack("<f", struct.pack("<f", LOG2E))[0]
LOG2E_LO = LOG2E - LOG2E_HI
LN2 = math.log(2.0)

def vr(a, n=1): return "v%d" % a if n == 1 else "v[%d:%d]" % (a, a + n - 1)
def ar(a, n=1): return "a%d" % a if n == 1 else "a[%d:%d]" % (a, a + n - 1)
def sr(a, n=1): return "s%d" % a if n == 1 else "s[%d:%d]" % (a, a + n - 1)

P_X, P_LAR, P_AI, P_CR, P_CI, P_LDT, P_DSK = 64, 66, 68, 70, 72, 74, 76
P_W1, P_B1, P_W2, P_B2 = 80, 82, 84, 86
P_OUT, P_DBG, P_WS = 88, 90, 92
def load_ptrs(A):
    A("s_load_dwordx16 s[64:79], s[0:1], 0")
    A("s_load_dwordx8 s[80:87], s[0:1], 64")
    A("s_load_dwordx4 s[88:91], s[0:1], 96")
    A("s_load_dwordx2 s[92:93], s[0:1], 112")
def srd(A, d, p, nbytes, off=0):
    if off:
        A("s_add_u32 s%d, s%d, 0x%x\ns_addc_u32 s%d, s%d, 0" % (d, p, off, d + 1, p + 1))
    else:
        A("s_mov_b32 s%d, s%d\ns_mov_b32 s%d, s%d" % (d, p, d + 1, p + 1))
    A("s_mov_b32 s%d, 0x%x\ns_mov_b32 s%d, 0x20000" % (d + 2, nbytes, d + 3))

def bf16r(A, dst, src):
    A("v_cvt_pk_bf16_f32 v%d, v%d, v%d" % (dst, src, src))
    A("v_and_b32 v%d, 0xffff0000, v%d" % (dst, dst))
def unpack(A, lo, hi, src):
    A("v_lshlrev_b32 v%d, 16, v%d" % (lo, src))
    A("v_and_b32 v%d, 0xffff0000, v%d" % (hi, src))
def pk(A, op, d, a, b, c=None, mods=""):
    if c is None: A("v_pk_%s_f32 %s, %s, %s %s" % (op, vr(d, 2), a, b, mods))
    else: A("v_pk_%s_f32 %s, %s, %s, %s %s" % (op, vr(d, 2), a, b, c, mods))
def cmul(A, d, x, w, t):
    A("v_pk_mul_f32 %s, %s, %s op_sel_hi:[1,0]" % (vr(t, 2), vr(x, 2), vr(w, 2)))
    A("v_pk_fma_f32 %s, %s, %s, %s op_sel:[1,1,0] op_sel_hi:[0,1,1] neg_lo:[1,0,0]" % (vr(d, 2), vr(x, 2), vr(w, 2), vr(t, 2)))
def red32(A, regs, tmp):
    for m in ("quad_perm:[1,0,3,2]", "quad_perm:[2,3,0,1]", "row_half_mirror", "row_mirror"):
        for r in regs:
            A("v_add_f32_dpp v%d, v%d, v%d %s row_mask:0xf bank_mask:0xf" % (r, r, r, m))
    for r, t in zip(regs, tmp): A("v_mov_b32 v%d, v%d" % (t, r))
    for r, t in zip(regs, tmp): A("v_permlane16_swap_b32 v%d, v%d" % (r, t))
    for r, t in zip(regs, tmp): A("v_add_f32 v%d, v%d, v%d" % (r, r, t))
def exp_acc(A, dst, x, t0, t1, sL, sLlo, sLn2):
    A("v_mul_f32 v%d, %s, v%d" % (t0, sL, x))
    A("v_fma_f32 v%d, v%d, %s, -v%d" % (t1, x, sL, t0))
    A("v_fma_f32 v%d, v%d, %s, v%d" % (t1, x, sLlo, t1))
    A("v_exp_f32 v%d, v%d" % (dst, t0))
    A("v_mul_f32 v%d, %s, v%d" % (t1, sLn2, t1))
    A("v_fma_f32 v%d, v%d, v%d, v%d" % (dst, dst, t1, dst))
```

```python
from common import *
import numpy as np
IMG, TAB, C0, C1, UU = 0, 16384, 16384 + 3072, 16384 + 3072 + 4160, 16384 + 3072 + 8288
U0 = UU + 512
WREG = 32768

def bf16_round_int(l):
    a = np.array([l], dtype=np.float32).view(np.uint32)
    a = (a + 0x7fff + ((a >> 16) & 1)) & 0xffff0000
    return int(a.view(np.float32)[0])
def tab_off(l):
    if l < 0: return 21 * 128
    p = bf16_round_int(l)
    h = p >> 8
    f = [0, 8, 12, 14, 16, 17, 18, 19, 20][h]; e = [0, 1, 2, 2, 3, 3, 3, 3, 3][h]
    return (f + ((p & 7) >> e)) * 128 + ((p & 255) >> 3) * 4
def gather_table():
    out = []
    for quad in range(9):
        for lane in range(64):
            for k in range(4):
                e = 4 * quad + k; ps, j = e // 9, e % 9
                out.append(tab_off(2047 - 8 * (64 * ps + lane) - j))
    return out

GPOS = list(range(8)) + [256, 258, 260, 262, 512, 516, 768, 772, 1024, 1280, 1536, 1792, 2048]

def direct(A, w, aa, pconst, t):
    if pconst is None:
        A("v_fract_f32 v%d, v%d" % (t + 1, aa + 1)); A("v_exp_f32 v%d, v%d" % (t, aa))
    else:
        A("v_mul_f32 v%d, %s, v%d" % (t, pconst, aa)); A("v_mul_f32 v%d, %s, v%d" % (t + 1, pconst, aa + 1))
        A("v_fract_f32 v%d, v%d" % (t + 1, t + 1)); A("v_exp_f32 v%d, v%d" % (t, t))
    A("v_cos_f32 v%d, v%d" % (w, t + 1)); A("v_sin_f32 v%d, v%d" % (w + 1, t + 1))
    A("v_pk_mul_f32 %s, %s, %s op_sel_hi:[1,0]" % (vr(w, 2), vr(w, 2), vr(t, 2)))

def kgen_unit(A, prm, vdt, vW, R, sL, sLlo, sLn2):
    aa, cc, w1, w2, w4, w8, w256, t, X, Y, g8 = [R + 2 * k for k in range(11)]
    ST = R + 22
    va = R + 38
    for k in range(4): A("v_lshlrev_b32 v%d, 16, v%d" % (prm + k, prm + k))
    exp_acc(A, aa, prm, t, t + 1, sL, sLlo, sLn2)
    bf16r(A, aa, aa)
    A("v_mul_f32 v%d, v%d, v%d" % (aa, aa, vdt))
    A("v_mul_f32 v%d, v%d, v%d" % (aa + 1, prm + 1, vdt))
    A("v_mul_f32 v%d, %s, v%d" % (aa, hexf(-LOG2E), aa))
    A("v_mul_f32 v%d, 0.15915494, v%d" % (aa + 1, aa + 1))
    A("v_mul_f32 v%d, v%d, v%d" % (cc, prm + 2, vdt))
    A("v_mul_f32 v%d, v%d, v%d" % (cc + 1, prm + 3, vdt))
    pk(A, "add", cc, vr(cc, 2), vr(cc, 2))
    direct(A, w1, aa, None, t)
    direct(A, w8, aa, hexf(8.0), t)
    direct(A, w256, aa, hexf(256.0), t)
    cmul(A, w2, w1, w1, t); cmul(A, w4, w2, w2, t)
    nst = [0]
    def flush(q_re, q_im, st):
        A("v_xor_b32 v%d, %d, v%d" % (va, q_re * 16, vW)); A("ds_write_b128 v%d, %s" % (va, vr(st, 4)))
        A("v_xor_b32 v%d, %d, v%d" % (va + 1, q_im * 16, vW)); A("ds_write_b128 v%d, %s" % (va + 1, vr(st + 4, 4)))
    def packpair(st, k, a, b, neg):
        n = "-" if neg else ""
        A("v_cvt_pk_bf16_f32 v%d, %s, %s" % (st + k, a[0], b[0]))
        A("v_cvt_pk_bf16_f32 v%d, %s, %s" % (st + 4 + k, (n + a[1]) if a[1] != "0" else "0", (n + b[1]) if b[1] != "0" else "0"))
    P = lambda r: ("v%d" % r, "v%d" % (r + 1))
    Z = ("0", "0")
    st = ST
    cmul(A, Y, cc, w1, t); packpair(st, 0, P(cc), P(Y), True)
    for k in range(1, 4):
        cmul(A, X, Y, w1, t); cmul(A, Y, X, w1, t); packpair(st, k, P(X), P(Y), True)
    flush(8, 12, st)
    st = ST + 8
    cmul(A, g8, cc, w256, t); cmul(A, Y, g8, w2, t); packpair(st, 0, P(g8), P(Y), True)
    cmul(A, X, Y, w2, t); cmul(A, Y, X, w2, t); packpair(st, 1, P(X), P(Y), True)
    cmul(A, g8, g8, w256, t); cmul(A, Y, g8, w4, t); packpair(st, 2, P(g8), P(Y), True)
    cmul(A, g8, g8, w256, t); cmul(A, Y, g8, w4, t); packpair(st, 3, P(g8), P(Y), True)
    flush(9, 13, st)
    st = ST
    cmul(A, X, g8, w256, t); cmul(A, Y, X, w256, t); packpair(st, 0, P(X), P(Y), True)
    cmul(A, X, Y, w256, t); cmul(A, Y, X, w256, t); packpair(st, 1, P(X), P(Y), True)
    cmul(A, X, Y, w256, t); packpair(st, 2, P(X), Z, True)
    A("v_mov_b32 v%d, 0\nv_mov_b32 v%d, 0" % (st + 3, st + 7))
    flush(10, 14, st)
    for ch in range(4):
        st = ST + 8 * ((ch + 1) & 1)
        for k in range(4):
            if ch == 0 and k == 0:
                packpair(st, 0, ("1.0", "0"), P(w8), False)
                src = w8
            else:
                cmul(A, X, src, w8, t); cmul(A, Y, X, w8, t); packpair(st, k, P(X), P(Y), False); src = Y
        flush(ch, 4 + ch, st)

def kgen_mfma(A, vRE0, vRE1, vRG0, vRG1, FB, ACC):
    def rd(k):
        b = FB + 8 * (k % 4)
        A("ds_read_b64_tr_b16 %s, v%d offset:%d" % (vr(b, 2), vRG0, 2048 * k))
        A("ds_read_b64_tr_b16 %s, v%d offset:%d" % (vr(b + 2, 2), vRG1, 2048 * k))
        A("ds_read_b64_tr_b16 %s, v%d offset:%d" % (vr(b + 4, 2), vRE0, 2048 * k))
        A("ds_read_b64_tr_b16 %s, v%d offset:%d" % (vr(b + 6, 2), vRE1, 2048 * k))
    A("s_waitcnt lgkmcnt(0)")
    rd(0); rd(1); rd(2)
    for k in range(8):
        A("s_waitcnt lgkmcnt(%d)" % (4 * min(2, 7 - k)))
        b = FB + 8 * (k % 4)
        A("v_mfma_f32_32x32x16_bf16 %s, %s, %s, %s" % (vr(ACC, 16), vr(b, 4), vr(b + 4, 4), vr(ACC, 16)))
        if k + 3 < 8: rd(k + 3)

def conv_phase(A, cur, nxt, ACC, vA, vB, first=False):
    loads = []
    for tau in range(8):
        o = 128 * (1 - (tau & 1))
        loads.append("ds_read2_b32 %s, v%d offset0:%d offset1:%d" % (vr(nxt + 4 * tau, 2), vA + (tau >> 1), o, o + 1))
        loads.append("ds_read2_b32 %s, v%d offset0:%d offset1:%d" % (vr(nxt + 4 * tau + 2, 2), vA + (tau >> 1), o + 2, o + 3))
        loads.append("ds_read_b128 %s, v%d offset:%d" % (vr(nxt + 32 + 4 * tau, 4), vB, 512 * tau))
    if cur is None:
        for l in loads: A(l)
        return
    n = 0
    for tau in range(8):
        for t in range(tau, 8):
            A("v_mfma_f32_16x16x32_bf16 %s, %s, %s, %s" % (vr(ACC + 4 * t, 4), vr(cur + 4 * tau, 4), vr(cur + 32 + 4 * (t - tau), 4), vr(ACC + 4 * t, 4)))
            if n < len(loads): A(loads[n])
            n += 1

def conv_kernel(name):
    A = Asm()
    A(".p2align 8\n%s:" % name)
    A("s_cmp_ge_u32 s2, 160\ns_cbranch_scc1 L_%s_end" % name)
    load_ptrs(A)
    A("s_getpc_b64 s[50:51]\nL_%s_pc:" % name)
    A("s_add_u32 s50, s50, gtab-L_%s_pc\ns_addc_u32 s51, s51, 0" % name)
    A("v_lshrrev_b32 v1, 6, v0\nv_and_b32 v0, 63, v0\nv_readfirstlane_b32 s3, v1")
    A("s_lshl_b32 s52, s2, 2\ns_add_u32 s52, s52, s3")
    A("s_lshl_b32 s53, s3, 15")
    A("s_waitcnt lgkmcnt(0)")
    for k, p in enumerate((P_LAR, P_AI, P_CR, P_CI)): srd(A, 4 + 4 * k, p, D * N * 2)
    srd(A, 20, P_LDT, D * 2); srd(A, 24, P_DSK, D * 2)
    srd(A, 28, P_WS, SZ_SD, WS_XT); srd(A, 32, P_WS, SZ_SD, WS_CV)
    PRM, GT, UL = 4, 16, 52
    vdt, vdsk = 2, 3
    A("s_mul_i32 s54, s52, 384\ns_lshl_b32 s55, s52, 1")
    A("v_lshlrev_b32 v1, 1, v0\nv_mov_b32 v68, 0")
    A("buffer_load_ushort v%d, v68, s[20:23], s55 offen" % vdt)
    A("buffer_load_ushort v%d, v68, s[24:27], s55 offen" % vdsk)
    for u in range(3):
        for k in range(4): A("buffer_load_ushort v%d, v1, %s, s54 offen offset:%d" % (PRM + 4 * u + k, sr(4 + 4 * k, 4), 128 * u))
    A("v_lshlrev_b32 v69, 4, v0")
    for q in range(9): A("global_load_dwordx4 %s, v69, s[50:51] offset:%d" % (vr(GT + 4 * q, 4), 1024 * q) if q < 4 else
                         "s_add_u32 s56, s50, %d\ns_addc_u32 s57, s51, 0\nglobal_load_dwordx4 %s, v69, s[56:57]" % (1024 * q, vr(GT + 4 * q, 4)))
    A("v_lshrrev_b32 v70, 2, v0\nv_mul_u32_u24 v70, 40960, v70\nv_and_b32 v71, 3, v0\nv_lshl_add_u32 v70, v71, 8, v70")
    A("s_lshr_b32 s56, s52, 4\ns_lshl_b32 s56, s56, 10\ns_and_b32 s57, s52, 15\ns_lshl_b32 s57, s57, 4\ns_add_u32 s56, s56, s57")
    for q in range(4):
        A("buffer_load_dwordx4 %s, v70, s[28:31], s56 offen" % vr(UL + 4 * q, 4))
        if q < 3: A("s_add_u32 s56, s56, %d" % (16 * 40960))
    A("s_mov_b32 s44, %s\ns_mov_b32 s45, %s\ns_mov_b32 s46, %s" % (hexf(LOG2E_HI), hexf(LOG2E_LO), hexf(LN2)))
    vW, vRE0, vRE1, vRG0, vRG1 = 72, 73, 74, 75, 76
    A("v_and_b32 v77, 7, v0\nv_and_b32 v78, 1, v0\nv_lshl_or_b32 v77, v78, 3, v77\nv_lshlrev_b32 v77, 4, v77")
    A("v_lshl_add_u32 v%d, v0, 8, v77\nv_add_u32 v%d, s53, v%d" % (vW, vW, vW))
    Z = 80
    for k in range(4): A("v_mov_b32 v%d, 0" % (Z + k))
    A("v_xor_b32 v77, %d, v%d\nds_write_b128 v77, %s" % (11 * 16, vW, vr(Z, 4)))
    A("v_xor_b32 v77, %d, v%d\nds_write_b128 v77, %s" % (15 * 16, vW, vr(Z, 4)))
    A("v_lshl_add_u32 v79, v0, 4, s53")
    A("s_mov_b32 exec_hi, 0\nds_write_b128 v79, %s offset:%d" % (vr(Z, 4), UU))
    A("s_mov_b64 exec, 3\nds_write_b128 v79, %s offset:%d\nds_write_b128 v79, %s offset:%d\ns_mov_b64 exec, -1" % (vr(Z, 4), C0 + 4096, vr(Z, 4), C1 + 4096))
    A("v_lshrrev_b32 v84, 5, v0\nv_lshlrev_b32 v84, 2, v84\nv_bfe_u32 v85, v0, 3, 1\nv_add_u32 v84, v84, v85")
    A("v_bfe_u32 v85, v0, 2, 1\nv_lshlrev_b32 v85, 2, v85")
    A("v_bfe_u32 v86, v0, 4, 1\nv_lshl_or_b32 v85, v86, 1, v85")
    A("v_bfe_u32 v86, v0, 1, 1\nv_or_b32 v85, v86, v85")
    for iota, dst in ((0, vRE0), (1, vRE1)):
        A("v_add_u32 v86, %d, v84" % (2 * iota))
        A("v_and_b32 v87, 1, v86\nv_lshl_or_b32 v87, v87, 3, v86")
        A("v_xor_b32 v87, v87, v85\nv_lshlrev_b32 v87, 4, v87\nv_lshl_add_u32 v87, v86, 8, v87")
        A("v_and_b32 v86, 1, v0\nv_lshl_add_u32 v87, v86, 3, v87\nv_add_u32 v%d, s53, v87" % dst)
    A("v_xor_b32 v%d, 128, v%d\nv_xor_b32 v%d, 128, v%d" % (vRG0, vRE0, vRG1, vRE1))
    KACC, FB, R = 96, 112, 144
    for k in range(16): A("v_mov_b32 v%d, 0" % (KACC + k))
    A("s_waitcnt vmcnt(13)")
    A("v_lshlrev_b32 v%d, 16, v%d\nv_lshlrev_b32 v%d, 16, v%d" % (vdt, vdt, vdsk, vdsk))
    exp_acc(A, 84, vdt, 85, 86, "s44", "s45", "s46")
    bf16r(A, vdt, 84)
    A("s_mov_b32 s58, 0\nL_%s_g:" % name)
    kgen_unit(A, PRM, vdt, vW, R, "s44", "s45", "s46")
    kgen_mfma(A, vRE0, vRE1, vRG0, vRG1, FB, KACC)
    for k in range(8): A("v_mov_b32 v%d, v%d" % (PRM + k, PRM + 4 + k))
    A("s_add_u32 s58, s58, 1\ns_cmp_lt_u32 s58, 3\ns_cbranch_scc1 L_%s_g" % name)
    A("v_lshrrev_b32 v84, 5, v0\nv_lshlrev_b32 v84, 9, v84\nv_and_b32 v85, 31, v0\nv_lshl_add_u32 v84, v85, 2, v84\nv_add_u32 v84, s53, v84")
    A("s_waitcnt vmcnt(0)")
    for q in range(4): A("ds_write_b128 v79, %s offset:%d" % (vr(UL + 4 * q, 4), U0 + 1024 * q))
    for k in range(36): A("v_add_u32 v%d, s53, v%d" % (GT + k, GT + k))
    for r in range(12): A("ds_write_b32 v84, v%d offset:%d" % (KACC + r, TAB + (r & 3) * 128 + (r >> 2) * 1024))
    A("s_waitcnt lgkmcnt(0)")
    for ps in range(4):
        V = 112 + 20 * ps
        for j in range(9): A("ds_read_b32 v%d, v%d offset:%d" % (V + j, GT + 9 * ps + j, TAB))
        A("s_waitcnt lgkmcnt(0)")
        for k in range(4):
            A("v_cvt_pk_bf16_f32 v%d, v%d, v%d" % (V + 10 + k, V + 2 * k, V + 2 * k + 1))
            A("v_cvt_pk_bf16_f32 v%d, v%d, v%d" % (V + 14 + k, V + 2 * k + 1, V + 2 * k + 2))
        A("ds_write_b128 v79, %s offset:%d" % (vr(V + 10, 4), C0 + 1024 * ps))
        A("ds_write_b128 v79, %s offset:%d" % (vr(V + 14, 4), C1 + 1024 * ps))
    vA, vB = 4, 8
    ACC, S0, S1 = 16, 48, 112
    A("v_and_b32 v9, 15, v0\nv_bfe_u32 v10, v0, 4, 1\nv_lshrrev_b32 v11, 5, v0")
    A("v_sub_u32 v12, 2047, v9\nv_lshl_add_u32 v12, v10, 3, v12\nv_lshlrev_b32 v13, 4, v11\nv_sub_u32 v12, v12, v13")
    A("v_lshrrev_b32 v12, 1, v12\nv_lshlrev_b32 v12, 2, v12")
    A("v_and_b32 v13, 1, v0\nv_mul_u32_u24 v13, %d, v13\nv_sub_u32 v12, v12, v13" % (C1 - C0))
    A("v_add_u32 v12, s53, v12")
    for sg in range(4): A("v_add_u32 v%d, %d, v12" % (vA + sg, C1 - 512 * (2 * sg + 1)))
    A("v_sub_u32 v12, v9, v11\nv_lshlrev_b32 v12, 5, v12\nv_lshl_add_u32 v12, v10, 4, v12\nv_add_u32 v12, s53, v12\nv_add_u32 v%d, %d, v12" % (vB, U0))
    for k in range(32): A("v_mov_b32 v%d, 0" % (ACC + k))
    A("s_waitcnt lgkmcnt(0)")
    conv_phase(A, None, S0, ACC, vA, vB)
    A("s_mov_b32 s58, 0\nL_%s_c:" % name)
    for cur, nxt in ((S0, S1), (S1, S0)):
        for k in range(5): A("v_subrev_u32 v%d, 64, v%d" % (vA + k, vA + k))
        A("s_waitcnt lgkmcnt(0)")
        conv_phase(A, cur, nxt, ACC, vA, vB)
    A("s_add_u32 s58, s58, 1\ns_cmp_lt_u32 s58, 4\ns_cbranch_scc1 L_%s_c" % name)
    A("v_lshrrev_b32 v10, 4, v0\nv_lshlrev_b32 v10, 3, v10\nv_lshl_add_u32 v10, v9, 5, v10")
    A("v_add_u32 v11, s53, v10")
    A("s_waitcnt lgkmcnt(0)")
    for t in range(8): A("ds_read_b64 %s, v11 offset:%d" % (vr(S0 + 2 * t, 2), U0 + 512 * t))
    A("s_lshl_b32 s56, s52, 12")
    A("s_waitcnt lgkmcnt(0)")
    T = S1
    for t in range(8):
        a = ACC + 4 * t; u = S0 + 2 * t
        A("v_cvt_pk_bf16_f32 v%d, v%d, v%d\nv_cvt_pk_bf16_f32 v%d, v%d, v%d" % (T, a, a + 1, T + 1, a + 2, a + 3))
        unpack(A, a, a + 1, T); unpack(A, a + 2, a + 3, T + 1)
        unpack(A, T + 2, T + 3, u); unpack(A, T + 4, T + 5, u + 1)
        pk(A, "mul", T + 2, vr(T + 2, 2), vr(vdt, 2), mods="op_sel:[0,1] op_sel_hi:[1,1]")
        pk(A, "mul", T + 4, vr(T + 4, 2), vr(vdt, 2), mods="op_sel:[0,1] op_sel_hi:[1,1]")
        A("v_cvt_pk_bf16_f32 v%d, v%d, v%d\nv_cvt_pk_bf16_f32 v%d, v%d, v%d" % (T, T + 2, T + 3, T + 1, T + 4, T + 5))
        unpack(A, T + 2, T + 3, T); unpack(A, T + 4, T + 5, T + 1)
        pk(A, "add", a, vr(a, 2), vr(T + 2, 2)); pk(A, "add", a + 2, vr(a + 2, 2), vr(T + 4, 2))
        A("v_cvt_pk_bf16_f32 v%d, v%d, v%d\nv_cvt_pk_bf16_f32 v%d, v%d, v%d" % (u, a, a + 1, u + 1, a + 2, a + 3))
        A("buffer_store_dwordx2 %s, v10, s[32:35], s56 offen offset:%d" % (vr(u, 2), 512 * t))
    A("L_%s_end:\ns_endpgm" % name)
    return A.text()
def gtab_text():
    t = gather_table()
    L = [".p2align 8", ".type gtab,@object", "gtab:"]
    for i in range(0, len(t), 16): L.append(".long " + ",".join(str(x) for x in t[i:i + 16]))
    L.append(".size gtab, %d" % (4 * len(t)))
    return "\n".join(L) + "\n"
```

```python
from common import *
GC1 = -2.0 * LOG2E * math.sqrt(2.0 / math.pi)
GC2 = GC1 * 0.044715

def stage_w(A, nks, nslots, sW, sOff, rowstride, vsrc, vrd, rd2off, sM0base):
    def dma(ks):
        for q in range(4):
            A("s_add_u32 m0, s%d, %d" % (sM0base, (ks % nslots) * 4096 + q * 1024))
            A("buffer_load_dwordx4 v%d, %s, s%d offen lds" % (vsrc[q & 1], sr(sW, 4), sOff))
            A("s_add_u32 s%d, s%d, %d" % (sOff, sOff, 8 * rowstride))
    for ks in range(min(nslots, nks)): dma(ks)
    for ks in range(nks):
        issued = min(nks, ks + nslots)
        A("s_waitcnt vmcnt(%d)" % (4 * (issued - ks - 1)))
        for T in range(4):
            o = (ks % nslots) * 4096
            A("ds_read_b64_tr_b16 %s, v%d offset:%d" % (ar(16 * ks + 4 * T, 2), vrd + T, o))
            A("ds_read_b64_tr_b16 %s, v%d offset:%d" % (ar(16 * ks + 4 * T + 2, 2), vrd + T, o + rd2off))
        if ks + nslots < nks:
            A("s_waitcnt lgkmcnt(0)")
            dma(ks + nslots)
    A("s_waitcnt lgkmcnt(0)")

def stream(A, nks, ndt, depth, sH, sOff, vl, vl2, HB, ACC, w_is_A, sc=""):
    def ld(ks, dt):
        b = HB + 4 * ndt * (ks % depth) + 4 * dt
        if dt < 4: A("buffer_load_dwordx4 %s, v%d, %s, s%d offen offset:%d %s" % (vr(b, 4), vl, sr(sH, 4), sOff, 1024 * dt, sc))
        else: A("buffer_load_dwordx4 %s, v%d, %s, s%d offen %s" % (vr(b, 4), vl2, sr(sH, 4), sOff, sc))
        if dt == ndt - 1: A("s_add_u32 s%d, s%d, 40960" % (sOff, sOff))
    for ks in range(min(depth, nks)):
        for dt in range(ndt): ld(ks, dt)
    for ks in range(nks):
        for dt in range(ndt):
            if ks + depth < nks: n = depth * ndt - 1
            else: n = (ndt - 1 - dt) + (nks - 1 - ks) * ndt
            A("s_waitcnt vmcnt(%d)" % n)
            b = HB + 4 * ndt * (ks % depth) + 4 * dt
            for T in range(4):
                acc = ACC + 4 * (T * ndt + dt)
                w = ar(16 * ks + 4 * T, 4); h = vr(b, 4)
                a_, b_ = (w, h) if w_is_A else (h, w)
                A("v_mfma_f32_16x16x32_bf16 %s, %s, %s, %s" % (vr(acc, 4), a_, b_, vr(acc, 4) if ks else "0"))
            if ks + depth < nks: ld(ks + depth, dt)

def reader_addrs(A, vrd, vlane, t, gmul, sbase):
    A("v_bfe_u32 v%d, v%d, 2, 2" % (t, vlane))
    A("v_lshrrev_b32 v%d, 4, v%d" % (t + 1, vlane))
    A("v_mad_u32_u24 v%d, v%d, %d, v%d" % (t + 2, t + 1, gmul, t))
    A("v_lshlrev_b32 v%d, 7, v%d" % (t + 2, t + 2))
    A("v_lshrrev_b32 v%d, 1, v%d\nv_and_b32 v%d, 1, v%d\nv_lshl_or_b32 v%d, v%d, 1, v%d" % (t, t, t + 1, t + 1, t, t + 1, t))
    A("v_lshl_add_u32 v%d, v%d, 5, v%d" % (t + 2, t, t + 2))
    A("v_and_b32 v%d, 3, v%d\nv_lshl_add_u32 v%d, v%d, 3, v%d" % (t, vlane, t + 2, t, t + 2))
    A("v_add_u32 v%d, %s, v%d" % (vrd, sbase, t + 2))
    for T in range(1, 4): A("v_xor_b32 v%d, %d, v%d" % (vrd + T, 32 * T, vrd))

def gelu_pair(A, u, t, sC):
    pk(A, "mul", t, vr(u, 2), vr(u, 2))
    pk(A, "fma", t, vr(t, 2), sr(sC, 2), sr(sC, 2), mods="op_sel:[0,1,0] op_sel_hi:[1,1,0]")
    pk(A, "mul", t, vr(t, 2), vr(u, 2))
    A("v_exp_f32 v%d, v%d\nv_exp_f32 v%d, v%d" % (t, t, t + 1, t + 1))
    pk(A, "add", t, vr(t, 2), "1.0", mods="op_sel_hi:[1,0]")
    A("v_rcp_f32 v%d, v%d\nv_rcp_f32 v%d, v%d" % (t, t, t + 1, t + 1))
    pk(A, "mul", u, vr(u, 2), vr(t, 2))

def rnd_pair(A, p, t):
    A("v_cvt_pk_bf16_f32 v%d, v%d, v%d" % (t, p, p + 1)); unpack(A, p, p + 1, t)

def gemm1_kernel(name):
    A = Asm()
    ndt = 5
    A(".p2align 8\n%s:" % name)
    A("s_cmp_ge_u32 s2, 192\ns_cbranch_scc1 L_%s_end" % name)
    load_ptrs(A)
    A("v_lshrrev_b32 v1, 6, v0\nv_and_b32 v0, 63, v0\nv_readfirstlane_b32 s3, v1")
    A("s_and_b32 s40, s2, 7\ns_lshr_b32 s41, s2, 3")
    A("s_and_b32 s42, s40, 1\ns_lshl_b32 s42, s42, 2\ns_and_b32 s43, s41, 3\ns_add_u32 s42, s42, s43")
    A("s_lshr_b32 s43, s40, 1\ns_mul_i32 s43, s43, 6\ns_lshr_b32 s44, s41, 2\ns_add_u32 s43, s43, s44")
    A("s_lshl_b32 s53, s3, 15")
    A("s_waitcnt lgkmcnt(0)")
    srd(A, 4, P_W1, S * F * 2); srd(A, 8, P_WS, SZ_SD, WS_HT); srd(A, 12, P_WS, SZ_G, WS_G); srd(A, 16, P_B1, F * 2)
    A("v_lshrrev_b32 v1, 3, v0\nv_mul_u32_u24 v2, 3072, v1\nv_bfe_u32 v1, v1, 1, 1")
    A("v_bfe_u32 v3, v0, 1, 2\nv_xor_b32 v3, v3, v1\nv_lshl_add_u32 v2, v3, 5, v2")
    A("v_and_b32 v1, 1, v0\nv_lshl_add_u32 v2, v1, 4, v2\nv_xor_b32 v3, 64, v2")
    reader_addrs(A, 4, 0, 8, 8, "s53")
    A("s_mul_i32 s45, s3, %d\ns_lshl_b32 s46, s43, 7\ns_add_u32 s45, s45, s46" % (512 * 3072))
    A("v_lshrrev_b32 v8, 4, v0\nv_lshlrev_b32 v8, 3, v8")
    B1 = 10
    stage_w(A, 16, 8, 4, 45, 3072, [2, 3], 4, 512, 53)
    A("s_barrier")
    A("v_lshlrev_b32 v9, 4, v0\nv_add_u32 v10, 4096, v9")
    A("s_mul_i32 s45, s3, %d\ns_mul_i32 s46, s42, %d\ns_add_u32 s45, s45, s46" % (16 * 40960, ndt * 1024))
    ACC, HB = 16, 96
    stream(A, 16, ndt, 8, 8, 45, 9, 10, HB, ACC, True)
    BB = 160
    A("s_mul_i32 s47, s3, 20480\nv_add_u32 v11, s47, v9")
    for n in range(3):
        A("s_add_u32 s48, s3, %d\ns_cmp_ge_u32 s48, 5\ns_cselect_b32 s49, 64, 0\ns_lshl_b32 s50, s43, 7\ns_add_u32 s49, s49, s50" % (4 * n))
        A("buffer_load_dwordx2 %s, v8, s[16:19], s49 offen" % vr(BB + 4 * n, 2))
        A("buffer_load_dwordx2 %s, v8, s[16:19], s49 offen offset:32" % vr(BB + 4 * n + 2, 2))
    for t in range(20): A("ds_write_b128 v11, %s offset:%d" % (vr(ACC + 4 * t, 4), 1024 * t))
    A("s_mov_b32 s60, %s\ns_mov_b32 s61, %s" % (hexf(GC1), hexf(GC2)))
    A("s_waitcnt lgkmcnt(0)\ns_barrier\ns_waitcnt vmcnt(0)")
    for n in range(3):
        if n == 2: A("s_cmp_ge_u32 s3, 2\ns_cbranch_scc1 L_%s_end" % name)
        A("s_add_u32 s48, s3, %d\ns_cmp_ge_u32 s48, 5\ns_cselect_b32 s49, 5, 0\ns_add_u32 s50, s48, s49\ns_lshl_b32 s50, s50, 10" % (4 * n))
        A("v_add_u32 v12, s50, v9\nv_add_u32 v13, 40960, v12")
        P = 16 + 32 * n
        for w in range(4):
            A("ds_read_b128 %s, v%d offset:%d" % (vr(P + 8 * w, 4), 12 + (w >> 1), 20480 * (w & 1)))
            A("ds_read_b128 %s, v%d offset:%d" % (vr(P + 8 * w + 4, 4), 12 + (w >> 1), 20480 * (w & 1) + 5120))
        A("s_sub_u32 s48, s48, s49\ns_lshr_b32 s49, s49, 2\ns_lshl_b32 s51, s43, 1\ns_add_u32 s49, s49, s51\ns_mul_i32 s49, s49, 40")
        A("s_mul_i32 s51, s42, 5\ns_add_u32 s49, s49, s51\ns_add_u32 s49, s49, s48\ns_lshl_b32 s49, s49, 10")
        T = BB + 16
        for k in range(4): unpack(A, T + 2 * k, T + 2 * k + 1, BB + 4 * n + k)
        A("s_waitcnt lgkmcnt(0)")
        for k in range(4):
            p = P + 2 * k
            pk(A, "add", p, vr(p, 2), vr(p + 8, 2)); pk(A, "add", p + 16, vr(p + 16, 2), vr(p + 24, 2)); pk(A, "add", p, vr(p, 2), vr(p + 16, 2))
            rnd_pair(A, p, T + 8)
            pk(A, "add", p, vr(p, 2), vr(T + 2 * k, 2))
            rnd_pair(A, p, T + 8)
            gelu_pair(A, p, T + 10, 60)
            A("v_cvt_pk_bf16_f32 v%d, v%d, v%d" % (P + 8 + k, p, p + 1))
        A("buffer_store_dwordx4 %s, v9, s[12:15], s49 offen" % vr(P + 8, 4))
    A("L_%s_end:\ns_endpgm" % name)
    return A.text()

def gemm2_kernel(name):
    A = Asm()
    ndt = 5
    A(".p2align 8\n%s:" % name)
    A("s_cmp_ge_u32 s2, 256\ns_cbranch_scc1 L_%s_end" % name)
    load_ptrs(A)
    A("v_lshrrev_b32 v1, 6, v0\nv_and_b32 v0, 63, v0\nv_readfirstlane_b32 s3, v1")
    A("s_and_b32 s40, s2, 7\ns_lshr_b32 s41, s2, 3")
    A("s_and_b32 s42, s40, 1\ns_lshl_b32 s42, s42, 2\ns_and_b32 s43, s41, 3\ns_add_u32 s42, s42, s43")
    A("s_lshr_b32 s43, s40, 1\ns_lshl_b32 s43, s43, 3\ns_lshr_b32 s44, s41, 2\ns_add_u32 s43, s43, s44")
    A("s_lshl_b32 s53, s3, 15")
    A("s_waitcnt lgkmcnt(0)")
    srd(A, 4, P_W2, S * F * 2); srd(A, 8, P_WS, SZ_G, WS_G); srd(A, 12, P_WS, SZ_SD, WS_CV); srd(A, 16, P_B2, S * 2)
    srd(A, 20, P_X, SZ_SD); srd(A, 24, P_OUT, SZ_SD)
    A("v_lshrrev_b32 v1, 3, v0\nv_lshlrev_b32 v2, 12, v1\nv_lshrrev_b32 v1, 1, v1")
    A("v_bfe_u32 v3, v0, 1, 2\nv_xor_b32 v3, v3, v1\nv_lshl_add_u32 v2, v3, 5, v2")
    A("v_and_b32 v1, 1, v0\nv_lshl_add_u32 v2, v1, 4, v2")
    reader_addrs(A, 4, 0, 8, 4, "s53")
    A("s_mul_i32 s45, s3, %d\ns_lshl_b32 s46, s43, 7\ns_add_u32 s45, s45, s46" % (384 * 4096))
    stage_w(A, 12, 8, 4, 45, 4096, [2, 2], 4, 2048, 53)
    A("s_barrier")
    CVL = 81920
    A("s_mul_i32 s45, s42, %d\ns_lshl_b32 s46, s43, 7\ns_add_u32 s45, s45, s46\ns_lshl_b32 s46, s3, 15\ns_add_u32 s45, s45, s46" % (80 * 4096))
    A("s_lshl_b32 s46, s3, 10\ns_add_u32 s46, s46, %d" % CVL)
    for n in range(3):
        if n == 2: A("s_cmp_ge_u32 s3, 2\ns_cbranch_scc1 L_%s_nocv" % name)
        A("s_add_u32 m0, s46, %d" % (4096 * n))
        A("buffer_load_dwordx4 v2, s[12:15], s45 offen lds")
        A("s_add_u32 s45, s45, %d" % (32 * 4096))
    A("L_%s_nocv:" % name)
    A("s_waitcnt vmcnt(0)")
    A("v_lshlrev_b32 v9, 4, v0\nv_add_u32 v10, 4096, v9")
    A("s_mul_i32 s45, s3, %d\ns_mul_i32 s46, s42, %d\ns_add_u32 s45, s45, s46" % (12 * 40960, ndt * 1024))
    ACC, HB = 16, 96
    stream(A, 12, ndt, 8, 8, 45, 9, 10, HB, ACC, False)
    A("v_and_b32 v12, 15, v0\nv_lshlrev_b32 v13, 1, v12\nv_mul_u32_u24 v12, 1280, v12\nv_lshrrev_b32 v14, 4, v0\nv_lshl_add_u32 v12, v14, 3, v12")
    A("s_lshl_b32 s46, s43, 2\ns_add_u32 s46, s46, s3\ns_lshl_b32 s47, s46, 5\ns_mul_i32 s46, s46, %d\ns_mul_i32 s48, s42, 160\ns_add_u32 s46, s46, s48" % (16 * 1280))
    XR = HB
    for dt in range(5): A("buffer_load_dwordx2 %s, v12, s[20:23], s46 offen offset:%d" % (vr(XR + 2 * dt, 2), 32 * dt))
    A("buffer_load_ushort v%d, v13, s[16:19], s47 offen" % (XR + 10))
    A("s_mul_i32 s47, s3, 20480\nv_add_u32 v11, s47, v9")
    for t in range(20): A("ds_write_b128 v11, %s offset:%d" % (vr(ACC + 4 * t, 4), 1024 * t))
    A("v_subrev_u32 v14, s53, v4\ns_lshl_b32 s47, s3, 5\nv_xor_b32 v14, s47, v14\nv_add_u32 v14, %d, v14" % CVL)
    A("s_mul_i32 s47, s3, 5120\nv_add_u32 v15, s47, v9\nv_add_u32 v8, 40960, v15")
    A("s_waitcnt lgkmcnt(0)\ns_barrier")
    CR = XR + 12
    for dt in range(5): A("ds_read_b64_tr_b16 %s, v14 offset:%d" % (vr(CR + 2 * dt, 2), 2048 * dt))
    for dt in range(5):
        for w in range(4): A("ds_read_b128 %s, v%d offset:%d" % (vr(16 + 16 * dt + 4 * w, 4), (15, 8)[w >> 1], 20480 * (w & 1) + 1024 * dt))
    A("s_waitcnt vmcnt(0) lgkmcnt(0)")
    b2 = XR + 10
    A("v_lshlrev_b32 v%d, 16, v%d" % (b2, b2))
    T = CR + 10
    for dt in range(5):
        for k in range(2):
            p = 16 + 16 * dt + 2 * k
            pk(A, "add", p, vr(p, 2), vr(p + 4, 2)); pk(A, "add", p + 8, vr(p + 8, 2), vr(p + 12, 2)); pk(A, "add", p, vr(p, 2), vr(p + 8, 2))
            rnd_pair(A, p, T)
            pk(A, "add", p, vr(p, 2), vr(b2, 2), mods="op_sel_hi:[1,0]")
            rnd_pair(A, p, T)
            unpack(A, T + 2, T + 3, XR + 2 * dt + k); unpack(A, T + 4, T + 5, CR + 2 * dt + k)
            pk(A, "add", T + 2, vr(T + 2, 2), vr(T + 4, 2))
            rnd_pair(A, T + 2, T)
            pk(A, "add", p, vr(p, 2), vr(T + 2, 2))
            A("v_cvt_pk_bf16_f32 v%d, v%d, v%d" % (XR + 2 * dt + k, p, p + 1))
        A("buffer_store_dwordx2 %s, v12, s[24:27], s46 offen offset:%d" % (vr(XR + 2 * dt, 2), 32 * dt))
    A("L_%s_end:\ns_endpgm" % name)
    return A.text()
```

```python
from common import *
LN_STRIDE = 1344
LN_TILE = 8 * LN_STRIDE
def ln_loads(A, X, vlane, swave, swg, sX, vt0, vt1):
    A("v_lshrrev_b32 v%d, 5, v%d" % (vt0, vlane))
    A("s_lshl_b32 s40, %s, 3\ns_lshl_b32 s41, %s, 1\ns_add_u32 s40, s40, s41\ns_mul_i32 s40, s40, 1280" % (swg, swave))
    A("v_mul_u32_u24 v%d, 1280, v%d" % (vt0, vt0))
    A("v_and_b32 v%d, 31, v%d" % (vt1, vlane))
    A("v_lshl_add_u32 v%d, v%d, 3, v%d" % (vt0, vt1, vt0))
    A("v_lshl_add_u32 v%d, v%d, 3, v%d" % (vt1, vt1, vt0))
    A("buffer_load_dwordx4 %s, v%d, %s, s40 offen" % (vr(X, 4), vt1, sr(sX, 4)))
    A("buffer_load_dwordx4 %s, v%d, %s, s40 offen offset:512" % (vr(X + 4, 4), vt1, sr(sX, 4)))
    A("buffer_load_dwordx2 %s, v%d, %s, s40 offen offset:1024" % (vr(X + 8, 2), vt0, sr(sX, 4)))

def ln_one(A, X, Fv, T, OUTP):
    for k in range(10): unpack(A, Fv + 2 * k, Fv + 2 * k + 1, X + k)
    acc = T
    pk(A, "add", acc, vr(Fv, 2), vr(Fv + 2, 2))
    pk(A, "add", acc + 2, vr(Fv + 4, 2), vr(Fv + 6, 2))
    for k in range(4, 10): pk(A, "add", acc + 2 * (k & 1), vr(acc + 2 * (k & 1), 2), vr(Fv + 2 * k, 2))
    pk(A, "add", acc, vr(acc, 2), vr(acc + 2, 2))
    A("v_add_f32 v%d, v%d, v%d" % (acc, acc, acc + 1))
    red32(A, [acc], [acc + 1])
    mean, mb = T + 4, T + 5
    A("v_mul_f32 v%d, %s, v%d" % (mean, hexf(1.0 / 640), acc))
    bf16r(A, mb, mean)
    for k in range(10): pk(A, "add", Fv + 2 * k, vr(Fv + 2 * k, 2), vr(mb - 1, 2), mods="op_sel:[0,1] op_sel_hi:[1,1] neg_lo:[0,1] neg_hi:[0,1]")
    pk(A, "mul", acc, vr(Fv, 2), vr(Fv, 2))
    pk(A, "mul", acc + 2, vr(Fv + 2, 2), vr(Fv + 2, 2))
    for k in range(2, 10): pk(A, "fma", acc + 2 * (k & 1), vr(Fv + 2 * k, 2), vr(Fv + 2 * k, 2), vr(acc + 2 * (k & 1), 2))
    pk(A, "add", acc, vr(acc, 2), vr(acc + 2, 2))
    A("v_add_f32 v%d, v%d, v%d" % (acc, acc, acc + 1))
    for k in range(5): A("v_cvt_pk_bf16_f32 v%d, v%d, v%d" % (OUTP + k, Fv + 2 * k, Fv + 2 * k + 1))
    red32(A, [acc], [acc + 1])
    for k in range(5, 10): A("v_cvt_pk_bf16_f32 v%d, v%d, v%d" % (OUTP + k, Fv + 2 * k, Fv + 2 * k + 1))
    A("v_sub_f32 v%d, v%d, v%d" % (mean, mean, mb))
    A("v_mul_f32 v%d, v%d, v%d" % (mean, mean, mean))
    A("v_fma_f32 v%d, v%d, s42, -v%d" % (acc, acc, mean))
    A("v_max_f32 v%d, 0, v%d" % (acc, acc))
    bf16r(A, acc, acc)
    A("v_add_f32 v%d, %s, v%d" % (acc, hexf(1e-5), acc))
    bf16r(A, acc, acc)
    A("v_sqrt_f32 v%d, v%d" % (acc, acc))
    for k in range(2): unpack(A, Fv + 2 * k, Fv + 2 * k + 1, OUTP + k)
    bf16r(A, acc, acc)
    A("v_rcp_f32 v%d, v%d" % (acc, acc))
    for k in range(2, 10): unpack(A, Fv + 2 * k, Fv + 2 * k + 1, OUTP + k)
    for k in range(10): pk(A, "mul", Fv + 2 * k, vr(Fv + 2 * k, 2), vr(acc, 2), mods="op_sel_hi:[1,0]")
    for k in range(10): A("v_cvt_pk_bf16_f32 v%d, v%d, v%d" % (OUTP + k, Fv + 2 * k, Fv + 2 * k + 1))

def ln_body(A, X, Hh, Fv, T, vlane, swave, swg, sHT, sXT, ldsbase, sc=""):
    a0, a1 = T + 8, T + 9
    A("s_mov_b32 s42, %s" % hexf(1.0 / 640))
    A("v_lshrrev_b32 v%d, 5, v%d" % (a0, vlane))
    A("s_lshl_b32 s41, %s, 1" % swave)
    A("v_add_u32 v%d, s41, v%d" % (a0, a0))
    A("v_mul_u32_u24 v%d, %d, v%d" % (a0, LN_STRIDE, a0))
    A("v_add_u32 v%d, %d, v%d" % (a0, ldsbase, a0))
    A("v_and_b32 v%d, 31, v%d" % (a1, vlane))
    A("v_lshl_add_u32 v%d, v%d, 3, v%d" % (a0, a1, a0))
    A("v_lshl_add_u32 v%d, v%d, 3, v%d" % (a1, a1, a0))
    ln_one(A, X, Fv, T, X)
    A("ds_write_b128 v%d, %s" % (a1, vr(X, 4)))
    A("ds_write_b128 v%d, %s offset:512" % (a1, vr(X + 4, 4)))
    A("ds_write_b64 v%d, %s offset:1024" % (a0, vr(X + 8, 2)))
    ln_one(A, X, Fv, T, Hh)
    A("ds_write_b128 v%d, %s offset:%d" % (a1, vr(Hh, 4), LN_TILE))
    A("ds_write_b128 v%d, %s offset:%d" % (a1, vr(Hh + 4, 4), LN_TILE + 512))
    A("ds_write_b64 v%d, %s offset:%d" % (a0, vr(Hh + 8, 2), LN_TILE + 1024))
    r0, g0 = T, T + 1
    A("v_bfe_u32 v%d, v%d, 2, 2" % (r0, vlane))
    A("v_mul_u32_u24 v%d, %d, v%d" % (r0, LN_STRIDE, r0))
    A("v_lshrrev_b32 v%d, 4, v%d" % (g0, vlane))
    A("v_lshl_add_u32 v%d, v%d, 5, v%d" % (r0, g0, r0))
    A("v_and_b32 v%d, 3, v%d" % (T + 2, vlane))
    A("v_lshl_add_u32 v%d, v%d, 3, v%d" % (r0, T + 2, r0))
    A("v_add_u32 v%d, %d, v%d" % (r0, ldsbase, r0))
    A("v_lshlrev_b32 v%d, 10, v%d" % (g0, g0))
    A("v_and_b32 v%d, 15, v%d" % (T + 2, vlane))
    A("v_lshl_add_u32 v%d, v%d, 4, v%d" % (g0, T + 2, g0))
    A("s_lshr_b32 s43, %s, 2\ns_mul_i32 s43, s43, 40960\ns_and_b32 s44, %s, 3\ns_lshl_b32 s44, s44, 8\ns_add_u32 s43, s43, s44" % (swg, swg))
    A("s_lshl_b32 s44, %s, 7" % swave)
    A("v_add_u32 v%d, s44, v%d" % (r0, r0))
    A("s_lshl_b32 s44, %s, 12\ns_add_u32 s43, s43, s44" % swave)
    A("s_waitcnt lgkmcnt(0)\ns_barrier")
    Fq = Fv
    def rd(dst, off):
        A("ds_read_b64_tr_b16 %s, v%d offset:%d" % (vr(dst, 2), r0, off))
        A("ds_read_b64_tr_b16 %s, v%d offset:%d" % (vr(dst + 2, 2), r0, off + 4 * LN_STRIDE))
    rd(Fq, LN_TILE); rd(Fq + 4, LN_TILE + 512); rd(Fq + 8, 0); rd(Fq + 12, 512)
    A("s_mov_b32 s45, %d\ns_mov_b32 s46, %d" % (1024 - 256, 32768 - 8192 + (WS_XT - WS_HT)))
    A("s_cmp_lt_u32 %s, 2" % swave)
    A("s_cmov_b32 s45, %d" % (LN_TILE + 1024))
    A("s_cmov_b32 s46, %d" % (32768))
    A("v_add_u32 v%d, s45, v%d" % (T + 2, r0))
    A("ds_read_b64_tr_b16 %s, v%d" % (vr(Fq + 16, 2), T + 2))
    A("ds_read_b64_tr_b16 %s, v%d offset:%d" % (vr(Fq + 18, 2), T + 2, 4 * LN_STRIDE))
    A("s_add_u32 s46, s46, s43\ns_add_u32 s47, s43, 16384\ns_add_u32 s48, s43, %d\ns_add_u32 s49, s47, %d" % (WS_XT - WS_HT, WS_XT - WS_HT))
    A("s_waitcnt lgkmcnt(8)")
    A("buffer_store_dwordx4 %s, v%d, %s, s43 offen %s" % (vr(Fq, 4), g0, sr(sHT, 4), sc))
    A("s_waitcnt lgkmcnt(6)")
    A("buffer_store_dwordx4 %s, v%d, %s, s47 offen %s" % (vr(Fq + 4, 4), g0, sr(sHT, 4), sc))
    A("s_waitcnt lgkmcnt(4)")
    A("buffer_store_dwordx4 %s, v%d, %s, s48 offen %s" % (vr(Fq + 8, 4), g0, sr(sHT, 4), sc))
    A("s_waitcnt lgkmcnt(2)")
    A("buffer_store_dwordx4 %s, v%d, %s, s49 offen %s" % (vr(Fq + 12, 4), g0, sr(sHT, 4), sc))
    A("s_waitcnt lgkmcnt(0)")
    A("buffer_store_dwordx4 %s, v%d, %s, s46 offen %s" % (vr(Fq + 16, 4), g0, sr(sHT, 4), sc))

def ln_kernel(name):
    A = Asm()
    A(".p2align 8\n%s:" % name)
    A("s_cmp_ge_u32 s2, 256\ns_cbranch_scc1 L_%s_end" % name)
    load_ptrs(A)
    A("v_lshrrev_b32 v1, 6, v0\nv_and_b32 v0, 63, v0\nv_readfirstlane_b32 s3, v1")
    A("s_waitcnt lgkmcnt(0)")
    srd(A, 4, P_X, SZ_SD)
    srd(A, 8, P_WS, 2 * SZ_SD, WS_HT)
    ln_loads(A, 4, 0, "s3", "s2", 4, 2, 3)
    A("s_waitcnt vmcnt(0)")
    ln_body(A, 4, 14, 24, 44, 0, "s3", "s2", 8, None, 0)
    A("L_%s_end:\ns_endpgm" % name)
    return A.text()
```

```python
import sys
from common import *
import ln, conv, gemm
def build(extra_pre=0, extra_post=0):
    hdr = open("cdna_kernels/%s.s.ref" % NAME).read().split("; Override launch")[0]
    L = [("ln_kernel", 256, 21504), ("conv_kernel", 160, 131072), ("gemm1_kernel", 192, 131072), ("gemm2_kernel", 256, 131072)]
    L = [("nop_kernel", 256, 0)] * extra_pre + L + [("nop_kernel", 256, 0)] * extra_post
    s = hdr + "".join("; @launch kernel=%s grid=(%d,1,1) block=(256,1,1) lds=%d\n" % l for l in L)
    s += '.amdgcn_target "amdgcn-amd-amdhsa--gfx950"\n.text\n'
    s += ln.ln_kernel("ln_kernel") + conv.conv_kernel("conv_kernel") + gemm.gemm1_kernel("gemm1_kernel") + gemm.gemm2_kernel("gemm2_kernel")
    if extra_pre or extra_post: s += ".p2align 8\nnop_kernel:\n    s_endpgm\n"
    s += conv.gtab_text()
    s += '.section .rodata,"a"\n' + kdesc("ln_kernel", 64, 96, 64) + kdesc("conv_kernel", 256, 96, 256) + kdesc("gemm1_kernel") + kdesc("gemm2_kernel")
    if extra_pre or extra_post: s += kdesc("nop_kernel", 8, 16, 8)
    return s
if __name__ == "__main__":
    out = sys.argv[1]
    open(out, "w").write(build(*[int(a) for a in sys.argv[2:]]))
```

```python
import sys, re
from common import *
import v1
WS_ST = 0xA00000
def instrument(s):
    names = ["ln_kernel", "conv_kernel", "gemm1_kernel", "gemm2_kernel"]
    nwg = [256, 160, 192, 256]
    for k, n in enumerate(names):
        s = s.replace("%s:\n" % n, "%s:\n    s_memrealtime s[94:95]\n" % n, 1)
        end = "L_%s_end:\n    s_endpgm" % n
        code = """L_%s_end:
    s_cmp_ge_u32 s2, %d
    s_cbranch_scc1 L_%s_end2
    s_waitcnt vmcnt(0) lgkmcnt(0)
    s_memrealtime s[96:97]
    s_add_u32 s4, s92, 0x%x
    s_addc_u32 s5, s93, 0
    s_mov_b32 s6, 0x10000
    s_mov_b32 s7, 0x20000
    s_lshl_b32 s8, s2, 2
    s_add_u32 s8, s8, s3
    s_lshl_b32 s8, s8, 3
    s_add_u32 s8, s8, %d
    s_waitcnt lgkmcnt(0)
    v_mov_b32 v2, s94
    v_mov_b32 v3, s96
    v_mov_b32 v1, s8
    s_mov_b64 exec, 1
    buffer_store_dwordx2 v[2:3], v1, s[4:7], 0 offen
L_%s_end2:
    s_endpgm""" % (n, nwg[k], n, WS_ST, k * 8192, n)
        assert end in s
        s = s.replace(end, code)
    rep = """.p2align 8
rep_kernel:
    s_cmp_ge_u32 s2, 1
    s_cbranch_scc1 L_rep_end
    s_load_dwordx4 s[12:15], s[0:1], 104
    v_mov_b32 v1, -1
    v_lshlrev_b32 v2, 2, v0
    v_and_b32 v3, 1, v0
    v_cmp_eq_u32 vcc, 1, v3
    s_nop 1
    v_cndmask_b32 v1, v1, 0, vcc
    ds_write_b32 v2, v1
    s_waitcnt lgkmcnt(0)
    s_barrier
    s_add_u32 s4, s14, 0x%x
    s_addc_u32 s5, s15, 0
    s_mov_b32 s6, 0x10000
    s_mov_b32 s7, 0x20000
    s_sub_u32 s8, s12, 0
    s_subb_u32 s9, s13, 0
    s_mov_b32 s10, 64
    s_mov_b32 s11, 0x20000
    v_lshlrev_b32 v4, 3, v0
""" % WS_ST
    for k in range(4):
        rep += """    v_cmp_gt_u32 vcc, %d, v0
    s_and_saveexec_b64 s[20:21], vcc
    s_mov_b32 s16, %d
    buffer_load_dwordx2 v[6:7], v4, s[4:7], s16 offen
    v_mov_b32 v8, %d
    s_waitcnt vmcnt(0)
    ds_min_u32 v8, v6
    ds_max_u32 v8, v7 offset:4
    ds_max_u32 v8, v6 offset:36
    ds_min_u32 v8, v7 offset:32
    s_mov_b64 exec, s[20:21]
""" % (nwg[k] * 4, k * 8192, 8 * k)
    rep += """    s_waitcnt lgkmcnt(0)
    s_barrier
    ds_read_b32 v1, v2
    v_mov_b32 v3, 0
    ds_read_b32 v3, v3
    s_waitcnt lgkmcnt(0)
    v_sub_u32 v1, v1, v3
    buffer_store_dword v1, v2, s[8:11], 0 offen
L_rep_end:
    s_endpgm
"""
    s = s.replace(".p2align 8\n.type gtab", rep + ".p2align 8\n.type gtab")
    s = s.replace('.amdgcn_target', "; @launch kernel=rep_kernel grid=(1,1,1) block=(1024,1,1) lds=4096\n.amdgcn_target", 1)
    s = s.replace("next_free_sgpr 96", "next_free_sgpr 100")
    s += kdesc("rep_kernel", 16, 32, 16)
    return s
open(sys.argv[1], "w").write(instrument(v1.build()))
```

```python
import sys, re
from common import *
import v1
WS_ST = 0xA00000
def instrument(s):
    names = ["ln_kernel", "conv_kernel", "gemm1_kernel", "gemm2_kernel"]
    nwg = [256, 160, 192, 256]
    for k, n in enumerate(names):
        s = s.replace("%s:\n" % n, "%s:\n    s_memrealtime s[94:95]\n" % n, 1)
        end = "L_%s_end:\n    s_endpgm" % n
        code = """L_%s_end:
    s_cmp_ge_u32 s2, %d
    s_cbranch_scc1 L_%s_end2
    s_waitcnt vmcnt(0) lgkmcnt(0)
    s_memrealtime s[96:97]
    s_add_u32 s4, s92, 0x%x
    s_addc_u32 s5, s93, 0
    s_mov_b32 s6, 0x10000
    s_mov_b32 s7, 0x20000
    s_lshl_b32 s8, s2, 2
    s_add_u32 s8, s8, s3
    s_lshl_b32 s8, s8, 3
    s_add_u32 s8, s8, %d
    s_waitcnt lgkmcnt(0)
    v_mov_b32 v2, s94
    v_mov_b32 v3, s96
    v_mov_b32 v1, s8
    s_mov_b64 exec, 1
    buffer_store_dwordx2 v[2:3], v1, s[4:7], 0 offen
L_%s_end2:
    s_endpgm""" % (n, nwg[k], n, WS_ST, k * 8192, n)
        assert end in s
        s = s.replace(end, code)
    rep = """.p2align 8
rep_kernel:
    s_cmp_ge_u32 s2, 1
    s_cbranch_scc1 L_rep_end
    s_load_dwordx4 s[12:15], s[0:1], 104
    v_mov_b32 v1, -1
    v_lshlrev_b32 v2, 2, v0
    v_and_b32 v3, 1, v0
    v_cmp_eq_u32 vcc, 1, v3
    s_nop 1
    v_cndmask_b32 v1, v1, 0, vcc
    ds_write_b32 v2, v1
    s_waitcnt lgkmcnt(0)
    s_barrier
    s_add_u32 s4, s14, 0x%x
    s_addc_u32 s5, s15, 0
    s_mov_b32 s6, 0x10000
    s_mov_b32 s7, 0x20000
    s_sub_u32 s8, s12, 0
    s_subb_u32 s9, s13, 0
    s_mov_b32 s10, 64
    s_mov_b32 s11, 0x20000
    v_lshlrev_b32 v4, 3, v0
""" % WS_ST
    for k in range(4):
        rep += """    v_cmp_gt_u32 vcc, %d, v0
    s_and_saveexec_b64 s[20:21], vcc
    s_mov_b32 s16, %d
    buffer_load_dwordx2 v[6:7], v4, s[4:7], s16 offen
    v_mov_b32 v8, %d
    s_waitcnt vmcnt(0)
    ds_min_u32 v8, v6
    ds_max_u32 v8, v7 offset:4
    ds_max_u32 v8, v6 offset:36
    ds_min_u32 v8, v7 offset:32
    s_mov_b64 exec, s[20:21]
""" % (nwg[k] * 4, k * 8192, 8 * k)
    rep += """    s_waitcnt lgkmcnt(0)
    s_barrier
    ds_read_b32 v1, v2
    v_mov_b32 v3, 0
    ds_read_b32 v3, v3
    s_waitcnt lgkmcnt(0)
    v_sub_u32 v1, v1, v3
    buffer_store_dword v1, v2, s[8:11], 0 offen
    v_readfirstlane_b32 s19, v0
    s_nop 4
    s_cmp_ge_u32 s19, 64
    s_cbranch_scc1 L_rep_end
    v_readlane_b32 s20, v1, SEL_A
    v_readlane_b32 s21, v1, SEL_B
    s_memrealtime s[22:23]
    s_nop 4
    s_sub_u32 s20, s21, s20
    s_min_u32 s20, s20, 10000
    s_mul_i32 s20, s20, KMUL
    s_waitcnt lgkmcnt(0)
L_spin:
    s_memrealtime s[24:25]
    s_waitcnt lgkmcnt(0)
    s_sub_u32 s26, s24, s22
    s_cmp_lt_u32 s26, s20
    s_cbranch_scc1 L_spin
L_rep_end:
    s_endpgm
"""
    s = s.replace(".p2align 8\n.type gtab", rep + ".p2align 8\n.type gtab")
    s = s.replace('.amdgcn_target', "; @launch kernel=rep_kernel grid=(1,1,1) block=(1024,1,1) lds=4096\n.amdgcn_target", 1)
    s = s.replace("next_free_sgpr 96", "next_free_sgpr 100")
    s += kdesc("rep_kernel", 16, 32, 16)
    return s
open(sys.argv[1], "w").write(instrument(v1.build()).replace("SEL_A", sys.argv[2]).replace("SEL_B", sys.argv[3]).replace("KMUL", sys.argv[4]))
```
